```python
import torch

def _softmax(x, axis=-1):
    return torch.softmax(x, dim=axis)
def _gelu(x):
    return torch.nn.functional.gelu(x, approximate="tanh")
def _silu(x):
    return torch.nn.functional.silu(x)
def _sigmoid(x):
    return torch.sigmoid(x)
def _layernorm(x, axis=-1, eps=1e-5):
    m = x.mean(dim=axis, keepdim=True)
    v = x.var(dim=axis, keepdim=True, unbiased=False)
    return (x - m) / torch.sqrt(v + eps)
def _scatter_add(tgt, idx, src, axis=0):
    return tgt.clone().index_add_(axis, idx, src)
def _segment_sum(src, seg, n):
    out = torch.zeros((n,) + src.shape[1:], dtype=src.dtype)
    return out.index_add_(0, seg, src)
def _pad(x, pw):
    flat = tuple(v for pair in reversed(pw) for v in pair)
    return torch.nn.functional.pad(x, flat)

kernel_name = 'gated_mix__linear_attn_block__dense_activation_squared_relu__prompt'

def setup_inputs():

    _w = (lambda a: (lambda t: t.to(torch.bfloat16) if t.is_floating_point() else t)(torch.as_tensor(a)))
    def _A_setup():
        B, S, D = 1, 2048, 448
        return {
            "x": _w((lambda *s: torch.randn(*s, dtype=torch.bfloat16) * 0.05)(B, S, D)),
            "wqkv": _w((lambda *s: torch.randn(*s, dtype=torch.bfloat16) * 0.8)(D, 3 * D)),
            "wo": _w((lambda *s: torch.randn(*s, dtype=torch.bfloat16) * 0.2)(D, D)),
        }
    _A_in = _A_setup()

    def _B_setup():
        B, S, D, F = 1, 2048, 448, 1792
        return {
            "x": _w((lambda *s: torch.randn(*s, dtype=torch.bfloat16) * 0.05)(B, S, D)),
            "w1": _w((lambda *s: torch.randn(*s, dtype=torch.bfloat16) * 0.05)(D, F)),
            "b1": _w((lambda *s: torch.randn(*s, dtype=torch.bfloat16) * 0.05)(F)),
            "w2": _w((lambda *s: torch.randn(*s, dtype=torch.bfloat16) * 0.05)(F, D)),
            "b2": _w((lambda *s: torch.randn(*s, dtype=torch.bfloat16) * 0.05)(D)),
        }
    _B_in = _B_setup()

    return {
        "A_x": _A_in["x"],
        "A_wqkv": _A_in["wqkv"],
        "A_wo": _A_in["wo"],
        "B_x": _B_in["x"],
        "B_w1": _B_in["w1"],
        "B_b1": _B_in["b1"],
        "B_w2": _B_in["w2"],
        "B_b2": _B_in["b2"],
        "gate_w": _w((lambda *s: torch.randn(*s, dtype=torch.bfloat16) * 0.05)(448) * 16.0),
    }

def reference(A_x, A_wqkv, A_wo, B_x, B_w1, B_b1, B_w2, B_b2, gate_w):
    def _A_ref(x, wqkv, wo):
        B, S, D = x.shape
        H = 16; Dh = D // H
        qkv = (lambda x, *d: x.permute(*d))((x @ wqkv).reshape(B, S, 3, H, Dh), 2, 0, 3, 1, 4)
        q, k, v = qkv[0], qkv[1], qkv[2]
        phi = lambda t: torch.where(t > 0, t + 1, torch.exp(t)) + 1e-6
        pq, pk = phi(q), phi(k)
        kv = torch.einsum("bhsd,bhse->bhde", pk, v)
        z = torch.einsum("bhsd->bhd", pk)
        num = torch.einsum("bhqd,bhde->bhqe", pq, kv)
        den = torch.einsum("bhqd,bhd->bhq", pq, z)[..., None] + 1e-6
        o = num / den
        return (lambda x, *d: x.permute(*d))(o, 0, 2, 1, 3).reshape(B, S, D) @ wo

    def _B_ref(x, w1, b1, w2, b2):
        h = torch.einsum("bsd,df->bsf", x, w1) + b1
        zero = torch.zeros_like(h)
        r = torch.where(h > zero, h, zero)
        h = r * r
        out = torch.einsum("bsf,fd->bsd", h, w2) + b2
        return out

    x = A_x
    g = _sigmoid((x * gate_w).sum(-1, keepdims=True))
    a = _A_ref(x, A_wqkv, A_wo)
    b = _B_ref(x, B_w1, B_b1, B_w2, B_b2)
    return g * a + (1 - g) * b
```

```python
import re

class Ins:
    __slots__ = ("text", "op", "args", "mods", "kind", "w", "r", "is_label", "cmt")
    def __init__(self, text):
        self.text = text
        self.is_label = False
        self.cmt = False

REG_RE = re.compile(r'^(-?)(?:abs\()?([vsa])(?:\[(\d+):(\d+)\]|(\d+))\)?$')

def parse_reg(tok):
    tok = tok.strip()
    if tok.startswith('|') and tok.endswith('|'): tok = tok[1:-1]
    if tok.startswith('-|') and tok.endswith('|'): tok = tok[2:-1]
    if tok == 'vcc': return [('s', 106), ('s', 107)]
    if tok == 'vcc_lo': return [('s', 106)]
    if tok == 'vcc_hi': return [('s', 107)]
    if tok == 'exec': return [('e', 0), ('e', 1)]
    if tok == 'm0': return [('m', 0)]
    m = REG_RE.match(tok)
    if not m: return []
    k = m.group(2)
    if m.group(3) is not None:
        return [(k, i) for i in range(int(m.group(3)), int(m.group(4)) + 1)]
    return [(k, int(m.group(5)))]

TRANS = ('v_exp_', 'v_log_', 'v_rcp_', 'v_rsq_', 'v_sqrt_', 'v_sin_', 'v_cos_')
NODST_S = ('s_cmp', 's_cbranch', 's_branch', 's_waitcnt', 's_barrier', 's_nop', 's_endpgm', 's_bitcmp', 's_sleep',
           's_setprio', 's_sethalt', 's_setreg')

def analyze(text):
    ins = Ins(text)
    t = text.split(';')[0].strip()
    if not t:
        ins.cmt = True; return ins
    if t.endswith(':'):
        ins.is_label = True; return ins
    if t.startswith('.'):
        ins.cmt = True; return ins
    parts = t.split(None, 1)
    op = parts[0]
    ins.op = op
    rest = parts[1] if len(parts) > 1 else ''
    toks = [x.strip() for x in rest.split(',')] if rest else []
    mods = []
    if toks:
        sp = toks[-1].split()
        if len(sp) > 1:
            toks[-1] = sp[0]; mods = sp[1:]
        elif len(sp) == 1 and not parse_reg(sp[0]) and re.match(r'^(offen|off|lds|sc0|sc1|nt|offset:.*|clamp)$', sp[0]) and op.startswith(('buffer', 'ds_')):
            mods = [sp[0]]; toks = toks[:-1]
    ins.args = toks; ins.mods = mods
    R = [parse_reg(x) for x in toks]
    w, r = [], []
    base = op.replace('_e32', '').replace('_e64', '')
    if op.startswith('v_mfma'):
        ins.kind = 'mfma'; w = R[0]; r = R[1] + R[2] + R[3]
    elif op.startswith('v_'):
        ins.kind = 'trans' if base.startswith(TRANS) else 'valu'
        if base.startswith('v_cmp'):
            w = R[0]; r = sum(R[1:], [])
        elif base.startswith('v_permlane') and 'swap' in base:
            w = R[0] + R[1]; r = R[0] + R[1]
        elif base in ('v_add_co_u32', 'v_sub_co_u32', 'v_addc_co_u32'):
            w = R[0] + R[1]; r = sum(R[2:], [])
        elif base.startswith(('v_fmac', 'v_pk_fmac', 'v_dot2c')):
            w = R[0]; r = sum(R, [])
        elif base == 'v_nop':
            pass
        else:
            w = R[0]; r = sum(R[1:], [])
        if base == 'v_cndmask_b32' and len(toks) == 3:
            r = r + parse_reg('vcc')
    elif op.startswith('ds_'):
        ins.kind = 'ds'
        if op.startswith(('ds_read', 'ds_bpermute', 'ds_permute', 'ds_swizzle')):
            w = R[0]; r = sum(R[1:], [])
        else:
            r = sum(R, [])
    elif op.startswith(('buffer_', 'global_')):
        ins.kind = 'vmem'
        islds = 'lds' in mods
        if op.startswith('buffer_load'):
            if islds:
                r = sum(R, []) + [('m', 0)]
            else:
                w = R[0]; r = sum(R[1:], [])
        elif op.startswith('global_load'):
            w = R[0]; r = sum(R[1:], [])
        elif op.startswith(('buffer_inv', 'buffer_wbl2')):
            pass
        else:
            r = sum(R, [])
            if op.startswith('buffer_atomic') and 'sc0' in mods: w = R[0]
    elif op.startswith('s_'):
        ins.kind = 'salu'
        if op.startswith(NODST_S):
            r = sum(R, [])
            if op.startswith('s_nop'): ins.kind = 'nop'
        elif op.startswith(('s_load', 's_memtime', 's_memrealtime', 's_getpc')):
            ins.kind = 'smem'; w = R[0]; r = sum(R[1:], [])
        elif 'saveexec' in op:
            w = R[0] + [('e', 0), ('e', 1)]; r = sum(R[1:], [])
        else:
            w = R[0]; r = sum(R[1:], [])
    else:
        raise ValueError("unknown instr: " + text)
    ins.w = set(w); ins.r = set(r)
    return ins

def mfma_passes(op):
    if '32x32x16' in op: return 8
    if '16x16x32' in op: return 4
    raise ValueError(op)

def states(ins):
    if ins.kind == 'nop':
        return int(ins.args[0], 0) + 1
    return 1

def need_between(a, b):
    n = 0
    vw = {x for x in a.w if x[0] == 'v'}
    sw = {x for x in a.w if x[0] == 's'}
    a_valu = a.kind in ('valu', 'trans')
    b_valu = b.kind in ('valu', 'trans')
    if a_valu and b.kind == 'mfma' and (vw & b.r): n = max(n, 2)
    if a.kind == 'mfma':
        p = mfma_passes(a.op)
        D = a.w
        if b.kind == 'mfma':
            C = set(parse_reg(b.args[3])); AB = set(parse_reg(b.args[1]) + parse_reg(b.args[2]))
            if D & AB: n = max(n, {4: 8, 8: 12}[p])
            if D & C:
                if C == D and mfma_passes(b.op) == p: pass
                else: n = max(n, {4: 6, 8: 10}[p])
            if (D & b.w) and b.w != D: n = max(n, {4: 6, 8: 10}[p])
        elif b_valu or b.kind in ('vmem', 'ds'):
            if (D & b.r) or (D & b.w): n = max(n, {4: 8, 8: 12}[p])
        C = set(parse_reg(a.args[3]))
        if b_valu and (C & b.w): n = max(n, {4: 3, 8: 7}[p])
    if a_valu and sw:
        if b_valu and (sw & b.r): n = max(n, 2)
        if b.kind == 'vmem' and (sw & b.r): n = max(n, 5)
        if b.op.startswith(('v_readlane', 'v_writelane')) and (sw & b.r): n = max(n, 4)
        if b.kind in ('salu', 'smem') and (sw & b.r) and not b.op.startswith('s_cbranch'): n = max(n, 2)
    if a_valu and vw:
        if b.op.startswith(('v_readfirstlane', 'v_readlane')) and (vw & b.r): n = max(n, 1)
        if b.op.startswith('v_permlane') and (vw & b.r): n = max(n, 2)
        if 'dpp' in ' '.join(getattr(b, 'mods', [])) or 'row_' in b.text or 'quad_perm' in b.text:
            if vw & b.r: n = max(n, 2)
    if a.kind == 'trans' and b.kind in ('valu', 'mfma') and (vw & b.r) : n = max(n, 1 if b.kind == 'valu' else 2)
    if a.kind == 'salu' and ('m', 0) in a.w and ('m', 0) in b.r and b.kind in ('vmem', 'ds'): n = max(n, 1)
    if a.kind == 'vmem' and ('store' in a.op) and ('x4' in a.op or 'x3' in a.op):
        data = set(parse_reg(a.args[0])) if a.op.startswith('buffer') else set(parse_reg(a.args[1]))
        if b_valu and (data & b.w): n = max(n, 2)
        elif (data & b.w): n = max(n, 1)
    if a_valu and any(x[0] == 'e' for x in a.w) and b.kind == 'mfma': n = max(n, 4)
    return n

class Prog:
    def __init__(self):
        self.lines = []
        self.uid = 0
    def __call__(self, text):
        for l in text.split('\n'):
            l = l.strip()
            if l: self.lines.append(l)
    def label(self, name): self.lines.append(name + ':')
    def newlabel(self, stem='L'):
        self.uid += 1
        return f"{stem}_{self.uid}"
    def fix_hazards(self):
        out = []
        nins = 0
        for l in self.lines:
            b = analyze(l)
            if b.cmt or b.is_label:
                out.append(b); continue
            dist = 0; need = 0
            for a in reversed(out):
                if a.cmt or a.is_label: continue
                req = need_between(a, b)
                if req > dist: need = max(need, req - dist)
                dist += states(a)
                if dist >= 20: break
            while need > 0:
                k = min(need, 16)
                out.append(analyze(f"s_nop {k-1}")); nins += 1
                need -= k
            out.append(b)
        self.lines = [a.text for a in out]
        return nins
    def text(self):
        o = []
        for l in self.lines:
            o.append(l if l.endswith(':') or l.startswith('.') else '  ' + l)
        return '\n'.join(o) + '\n'

class VM:
    def __init__(self, p): self.p = p; self.q = []
    def issue(self, tag): self.q.append(tag)
    def wait(self, tag, lg=None):
        idx = [i for i, t in enumerate(self.q) if t == tag]
        if not idx: return False
        n = len(self.q) - 1 - idx[-1]
        n = min(n, 63)
        self.p(f"s_waitcnt vmcnt({n})")
        self.q = self.q[len(self.q) - n:] if n else []
        return True
    def drain(self):
        self.p("s_waitcnt vmcnt(0)"); self.q = []
```

```python
import sys
sys.path.insert(0, 'gen')
from asmlib import *

NAME = "gated_mix__linear_attn_block__dense_activation_squared_relu__prompt"
KNAME = NAME + "_kernel"

HF1, HF2, KVF, PQF, OF = 0, 2048, 4096, 5120, 7168
WS_G   = 16384
WS_KVP = 65536
WS_PQ  = 0x120000
WS_O   = 0x300000
WS_H   = 0x500000
WS_ST  = 0x1000000
WS_SIZE = 268435456
XR = 0
RR = 114688
LDS_BYTES = 163840
P_AX, P_WQKV, P_WO, P_BX, P_W1, P_B1, P_W2, P_B2, P_GW, P_OUT, P_DBG, P_WS = 4, 6, 8, 10, 12, 14, 16, 18, 20, 22, 24, 26
S_WAVE, S_W, S_RB, S_CG, S_ROT, S_XCD, S_IDX, S_T = 28, 29, 30, 31, 32, 33, 34, 35
SRD_X, SRD_W, SRD_WS, SRD_A1, SRD_A2, SRD_O = 36, 40, 44, 48, 52, 56
LOG2E = 0x3fb8aa3b
EPS6  = 0x358637bd

def srd(n): return f"s[{n}:{n+3}]"
def vr(a, n=1): return f"v{a}" if n == 1 else f"v[{a}:{a+n-1}]"

def mk_srd(p, dst, ptr, size):
    p(f"s_mov_b32 s{dst}, s{ptr}")
    p(f"s_and_b32 s{dst+1}, s{ptr+1}, 0xffff")
    p(f"s_mov_b32 s{dst+2}, {size}")
    p(f"s_mov_b32 s{dst+3}, 0x20000")

class Cfg:
    fused = False
    stamps = False
    prefetch_code = False

def stamp(p, cfg, slot):
    if not cfg.stamps: return
    p("s_memrealtime s[96:97]")
    p("s_waitcnt lgkmcnt(0)")
    p("v_mov_b32 v250, s96")
    p("v_mov_b32 v251, s97")
    p(f"s_lshl_b32 s98, s2, 3")
    p(f"s_add_u32 s98, s98, s{S_WAVE}")
    p(f"s_mul_i32 s98, s98, 256")
    p(f"s_add_u32 s98, s98, {WS_ST + slot*8}")
    p("v_mov_b32 v252, 0")
    p("v_cmp_eq_u32 vcc, 0, v1")
    p("s_and_saveexec_b64 s[100:101], vcc")
    p(f"buffer_store_dwordx2 v[250:251], v252, {srd(SRD_WS)}, s98 offen")
    p("s_mov_b64 exec, s[100:101]")

def prologue(p, cfg, nwg):
    p(f"s_cmp_ge_u32 s2, {nwg}")
    p("s_cbranch_scc1 L_end")
    p("s_load_dwordx16 s[4:19], s[0:1], 0")
    p("s_load_dwordx8 s[20:27], s[0:1], 64")
    p("v_and_b32 v1, 63, v0")
    p("v_lshrrev_b32 v2, 6, v0")
    p("s_nop 0")
    p(f"v_readfirstlane_b32 s{S_WAVE}, v2")
    p(f"s_and_b32 s{S_XCD}, s2, 7")
    p(f"s_lshr_b32 s{S_IDX}, s2, 3")
    p(f"s_and_b32 s{S_W}, s{S_WAVE}, 3")
    p(f"s_and_b32 s{S_RB}, s{S_XCD}, 1")
    p(f"s_lshl_b32 s{S_RB}, s{S_RB}, 3")
    p(f"s_and_b32 s{S_T}, s{S_IDX}, 7")
    p(f"s_add_u32 s{S_RB}, s{S_RB}, s{S_T}")
    p(f"s_bfe_u32 s{S_CG}, s{S_XCD}, 0x10001")
    p(f"s_lshl_b32 s{S_CG}, s{S_CG}, 2")
    p(f"s_lshr_b32 s{S_T}, s{S_IDX}, 3")
    p(f"s_add_u32 s{S_CG}, s{S_CG}, s{S_T}")
    p(f"s_lshl_b32 s{S_T}, s{S_CG}, 1")
    p(f"s_add_u32 s{S_ROT}, s{S_RB}, s{S_T}")
    p(f"s_mul_i32 s{S_T}, s{S_ROT}, 37")
    p(f"s_lshr_b32 s{S_T}, s{S_T}, 8")
    p(f"s_mul_i32 s{S_T}, s{S_T}, 7")
    p(f"s_sub_u32 s{S_ROT}, s{S_ROT}, s{S_T}")
    p("v_and_b32 v2, 31, v1")
    p("v_lshrrev_b32 v3, 5, v1")
    p("v_bfe_u32 v4, v1, 4, 1")
    p("v_bfe_u32 v5, v1, 2, 2")
    p("v_and_b32 v6, 3, v1")
    p("s_waitcnt lgkmcnt(0)")
    mk_srd(p, SRD_WS, P_WS, WS_SIZE)
for x in range(30): assert (x*37)>>8 == x//7

S_KAP, S_KX, S_KW, S_XB, S_W1B, S_W2B, S_WK, S_SO = 60, 61, 62, 63, 64, 65, 66, 67
def loader1(p, cfg, role):
    pitch = 3584 if role == 'F' else 2688
    vX, vW1, vW2 = 10, 11, 16
    if role == 'F':
        mk_srd(p, SRD_X, P_AX, 2048*896); mk_srd(p, SRD_W, P_W1, 448*3584)
    else:
        mk_srd(p, SRD_X, P_AX, 2048*896); mk_srd(p, SRD_W, P_WQKV, 448*2688)
    p("v_lshrrev_b32 v7, 3, v1")
    p("v_mul_u32_u24 v7, 896, v7")
    p(f"s_and_b32 s{S_T}, s{S_W}, 1")
    p(f"s_lshl_b32 s{S_T}, s{S_T}, 2")
    p("v_lshrrev_b32 v8, 4, v1")
    p(f"v_or_b32 v9, s{S_T}, v8")
    p("v_and_b32 v13, 7, v1")
    p("v_xor_b32 v9, v9, v13")
    p(f"v_lshl_add_u32 v{vX}, v9, 4, v7")
    p("v_and_b32 v13, 15, v1")
    p("v_lshlrev_b32 v9, 2, v8")
    p("v_xor_b32 v13, v13, v9")
    p(f"v_mul_u32_u24 v7, {pitch}, v8")
    if role == 'F':
        p(f"v_lshl_add_u32 v{vW1}, v13, 4, v7")
        for v in range(3):
            p(f"v_add_u32 v13, {64*v}, v1")
            p("v_mul_u32_u24 v9, 171, v13")
            p("v_lshrrev_b32 v9, 11, v9")
            p("v_mul_u32_u24 v14, 12, v9")
            p("v_sub_u32 v14, v13, v14")
            p("v_mul_u32_u24 v9, 3584, v9")
            p(f"v_lshl_add_u32 v{vW2+v}, v14, 4, v9")
        p(f"s_mul_i32 s{S_W1B}, s{S_CG}, 448")
        p(f"s_mov_b32 s{S_W2B}, s{S_W1B}")
        p(f"s_bitcmp1_b32 s{S_CG}, 0")
        p(f"s_cselect_b32 s{S_T}, 192, 0")
        p(f"s_add_u32 s{S_W1B}, s{S_W1B}, s{S_T}")
        p(f"s_cselect_b32 s{S_T}, 0, 256")
    else:
        p("v_and_b32 v9, 7, v13")
        p("v_lshl_add_u32 v7, v9, 4, v7")
        p("v_lshrrev_b32 v9, 3, v13")
        p("v_mul_u32_u24 v9, 896, v9")
        p(f"v_add_u32 v{vW1}, v7, v9")
        p("v_lshrrev_b32 v7, 3, v1")
        p("v_mul_u32_u24 v7, 2688, v7")
        p("v_and_b32 v9, 1, v8")
        p("v_lshlrev_b32 v9, 2, v9")
        p("v_and_b32 v13, 7, v1")
        p("v_xor_b32 v9, v9, v13")
        p(f"v_lshl_add_u32 v{vW2}, v9, 4, v7")
        p(f"v_lshlrev_b32 v{vW2+1}, 4, v13")
    if role == 'F':
        p(f"s_bitcmp1_b32 s{S_CG}, 0")
        p(f"s_cselect_b32 s{S_T}, 0, 256")
        p(f"s_add_u32 s{S_W2B}, s{S_W2B}, s{S_T}")
        p(f"s_mul_i32 s{S_T}, s{S_W}, {4*3584}")
        p(f"s_add_u32 s{S_W1B}, s{S_W1B}, s{S_T}")
        p(f"s_mul_i32 s{S_T}, s{S_W}, {16*3584}")
        p(f"s_add_u32 s{S_W2B}, s{S_W2B}, s{S_T}")
    else:
        p(f"s_mul_i32 s{S_W1B}, s{S_CG}, 112")
        p(f"s_add_u32 s{S_W1B}, s{S_W1B}, 896")
        p(f"s_mul_i32 s{S_T}, s{S_W}, {4*2688}")
        p(f"s_add_u32 s{S_W1B}, s{S_W1B}, s{S_T}")
        p(f"s_lshl_b32 s{S_W2B}, s{S_CG}, 7")
        p(f"s_mul_i32 s{S_T}, s{S_W}, {16*2688}")
        p(f"s_add_u32 s{S_W2B}, s{S_W2B}, s{S_T}")
    p(f"s_lshl_b32 s{S_XB}, s{S_RB}, 4")
    p(f"s_add_u32 s{S_XB}, s{S_XB}, s{S_W}")
    p(f"s_mul_i32 s{S_XB}, s{S_XB}, {8*896}")
    p(f"s_lshl_b32 s{S_WK}, s{S_W}, 10")
    p(f"s_mov_b32 s{S_KAP}, s{S_ROT}")
    vm = VM(p)
    gate_branch = (role == 'A')
    def kap_setup():
        p(f"s_lshl_b32 s{S_KX}, s{S_KAP}, 7")
        p(f"s_mul_i32 s{S_KW}, s{S_KAP}, {64*pitch}")
    def kap_next():
        p(f"s_add_u32 s{S_KAP}, s{S_KAP}, 1")
        p(f"s_cmp_eq_u32 s{S_KAP}, 7")
        p(f"s_cselect_b32 s{S_KAP}, 0, s{S_KAP}")
    def issue(n):
        kap_setup()
        slot = n % 3
        if n < 7:
            p(f"s_add_u32 s{S_KX}, s{S_KX}, s{S_XB}")
            p(f"s_add_u32 s{S_KW}, s{S_KW}, s{S_W1B}")
            for i in range(4):
                p(f"s_add_u32 m0, s{S_WK}, {XR + n*16384 + i*4096}")
                if i: p(f"s_add_u32 s{S_SO}, s{S_KX}, {i*32*896}")
                so = S_SO if i else S_KX
                p(f"buffer_load_dwordx4 v{vX}, {srd(SRD_X)}, s{so} offen lds"); vm.issue(('s', n))
            for i in range(4):
                p(f"s_add_u32 m0, s{S_WK}, {RR + slot*16384 + i*4096}")
                if i: p(f"s_add_u32 s{S_SO}, s{S_KW}, {i*16*pitch}")
                so = S_SO if i else S_KW
                p(f"buffer_load_dwordx4 v{vW1}, {srd(SRD_W)}, s{so} offen lds"); vm.issue(('s', n))
        elif role == 'F':
            p(f"s_add_u32 s{S_KW}, s{S_KW}, s{S_W2B}")
            p(f"s_mul_i32 s{S_SO}, s{S_W}, 3072")
            for v in range(3):
                p(f"s_add_u32 m0, s{S_SO}, {RR + slot*16384 + v*1024}")
                p(f"buffer_load_dwordx4 v{vW2+v}, {srd(SRD_W)}, s{S_KW} offen lds"); vm.issue(('s', n))
        else:
            p(f"s_mul_i32 s{S_KW}, s{S_KAP}, s68")
            p(f"s_add_u32 s{S_KW}, s{S_KW}, s{S_W2B}")
            p(f"s_lshl_b32 s{S_SO}, s{S_W}, 11")
            for v in range(2):
                p(f"s_add_u32 m0, s{S_SO}, {RR + slot*16384 + v*1024}")
                if v: p(f"s_add_u32 s{S_KW}, s{S_KW}, s69")
                p(f"buffer_load_dwordx4 v{vW2}, {srd(SRD_A1)}, s{S_KW} offen lds"); vm.issue(('s', n))
        kap_next()
    if role == 'A':
        l1 = p.newlabel('Lq'); l2 = p.newlabel('Lq')
        p(f"s_cmp_eq_u32 s{S_CG}, 7")
        p(f"s_cbranch_scc1 {l1}")
        mk_srd(p, SRD_A1, P_WQKV, 448*2688)
        p(f"s_mov_b32 s68, {64*2688}")
        p(f"s_mov_b32 s69, {8*2688}")
        p(f"s_branch {l2}")
        p.label(l1)
        mk_srd(p, SRD_A1, P_GW, 896)
        p("s_mov_b32 s68, 128")
        p("s_mov_b32 s69, 0")
        p(f"s_mov_b32 s{S_W2B}, 0")
        p(f"v_mov_b32 v{vW2}, v{vW2+1}")
        p.label(l2)
    stamp(p, cfg, 0)
    for n in range(3): issue(n)
    vm.wait(('s', 0)); p("s_barrier")
    stamp(p, cfg, 1)
    for n in range(14):
        if n + 1 <= 13: vm.wait(('s', n+1))
        p("s_barrier")
        if n + 3 <= 13: issue(n + 3)
        if role == 'A' and n == 6: p("s_barrier")
        if n == 6: stamp(p, cfg, 2)
    stamp(p, cfg, 3)

class XAddr:
    def __init__(self, p, regs): self.p = p; self.regs = regs; self.shift = 0
    def off(self, i, extra=0):
        want = 65536 if i >= 4 else 0
        if want != self.shift:
            d = want - self.shift
            for r in self.regs:
                if d > 0: self.p(f"v_add_u32 v{r}, {d}, v{r}")
                else: self.p(f"v_subrev_u32 v{r}, {-d}, v{r}")
            self.shift = want
        return i*16384 - want + extra
    def adjust(self, sreg):
        for r in self.regs: self.p(f"v_add_u32 v{r}, s{sreg}, v{r}")

def xswz(p, regs, rowbase_sreg):
    p("v_bfe_u32 v7, v2, 1, 3")
    p(f"v_add_u32 v8, s{rowbase_sreg}, v2")
    p("v_lshlrev_b32 v8, 7, v8")
    for s in range(4):
        p(f"v_or_b32 v9, {2*s}, v3")
        p("v_xor_b32 v9, v9, v7")
        p(f"v_lshl_add_u32 v{regs[s]}, v9, 4, v8")

def interleave(p, main, extra, per):
    for text, ism in main:
        p(text)
        if ism:
            k = per() if callable(per) else per
            for _ in range(k):
                if extra: p(extra.pop(0))

def relu2_block(acc, tmp, pk, store):
    o = []
    for k in range(0, 8, 4):
        for r in range(4): o.append(f"v_max_f32 v{tmp+r}, 0, v{acc+k+r}")
        for r in range(4): o.append(f"v_mul_f32 v{acc+k+r}, v{acc+k+r}, v{tmp+r}")
    for r in range(4): o.append(f"v_cvt_pk_bf16_f32 v{pk+r}, v{acc+2*r}, v{acc+2*r+1}")
    o.append(store)
    return o

def phi_block(acc, n, tmp):
    o = []
    for k in range(0, n, 4):
        for r in range(4): o.append(f"v_mul_f32 v{tmp+r}, s70, v{acc+k+r}")
        for r in range(4): o.append(f"v_exp_f32_e64 v{tmp+r}, v{tmp+r} clamp")
        for r in range(4): o.append(f"v_max_f32 v{acc+k+r}, 0, v{acc+k+r}")
        for r in range(4): o.append(f"v_add_f32 v{acc+k+r}, v{acc+k+r}, v{tmp+r}")
        for r in range(4): o.append(f"v_add_f32 v{acc+k+r}, s71, v{acc+k+r}")
    return o

def bias_init(p, vm, srdreg, voff, soff, ntiles, tmp, dsts):
    for T in range(ntiles):
        for g in range(4):
            p(f"buffer_load_dwordx2 v[{tmp+(T*4+g)*2}:{tmp+(T*4+g)*2+1}], v{voff}, {srd(srdreg)}, s{soff} offen offset:{T*64+g*16}")
            vm.issue('bias')
def bias_unpack(p, ntiles, tmp, dsts):
    for T in range(ntiles):
        for g in range(4):
            a = tmp + (T*4+g)*2
            for d in dsts[T]:
                p(f"v_lshlrev_b32 v{d+4*g}, 16, v{a}")
                p(f"v_and_b32 v{d+4*g+1}, 0xffff0000, v{a}")
                p(f"v_lshlrev_b32 v{d+4*g+2}, 16, v{a+1}")
                p(f"v_and_b32 v{d+4*g+3}, 0xffff0000, v{a+1}")

def consumer_F(p, cfg):
    S_TG, S_WN, S_CB1, S_CB2, S_ST1, S_ST1B, S_ST2, S_D = 60, 61, 62, 63, 64, 65, 66, 67
    vXr = [10, 11, 12, 13]; vW1 = [14, 15]; vW2 = 16; vSt = 17; vB = 18
    FR = [24, 40]
    acc1 = lambda t, tt: 64 + (t*2+tt)*16
    acc2 = lambda T: 128 + T*16
    TMP, PK = 56, [176, 180]
    vm = VM(p)
    mk_srd(p, SRD_A1, P_B1, 3584)
    p(f"s_and_b32 s{S_TG}, s{S_W}, 1")
    p(f"s_lshr_b32 s{S_WN}, s{S_W}, 1")
    p(f"s_mul_i32 s{S_CB1}, s{S_CG}, 224")
    p(f"s_mov_b32 s{S_CB2}, s{S_CB1}")
    p(f"s_bitcmp1_b32 s{S_CG}, 0")
    p(f"s_cselect_b32 s{S_T}, 96, 0")
    p(f"s_add_u32 s{S_CB1}, s{S_CB1}, s{S_T}")
    p(f"s_bitcmp1_b32 s{S_CG}, 0")
    p(f"s_cselect_b32 s{S_T}, 0, 128")
    p(f"s_add_u32 s{S_CB2}, s{S_CB2}, s{S_T}")
    p(f"v_lshlrev_b32 v{vB}, 3, v3")
    p(f"s_lshl_b32 s{S_T}, s{S_WN}, 6")
    p(f"s_add_u32 s{S_T}, s{S_T}, s{S_CB1}")
    p(f"s_lshl_b32 s68, s{S_T}, 1")
    p(f"s_lshl_b32 s69, s{S_CB2}, 1")
    bias_init(p, vm, SRD_A1, vB, 68, 2, 184, None)
    bias_init(p, vm, SRD_A1, vB, 69, 3, 200, None)
    p(f"s_lshl_b32 s{S_T}, s{S_TG}, 6")
    xswz(p, vXr, S_T)
    p(f"s_lshl_b32 s{S_D}, s{S_W}, 5")
    p(f"s_sub_u32 s{S_D}, s{S_D}, s{S_T}")
    p(f"s_lshl_b32 s{S_D}, s{S_D}, 7")
    p("v_lshl_add_u32 v7, v3, 3, v5")
    p("v_lshlrev_b32 v8, 5, v4")
    p("v_lshl_add_u32 v8, v6, 3, v8")
    p("v_lshl_add_u32 v9, v7, 8, v8")
    p(f"v_add_u32 v9, {RR}, v9")
    p(f"s_lshl_b32 s{S_T}, s{S_WN}, 1")
    for t in range(2):
        p(f"v_xor_b32 v19, s{S_T}, v5")
        if t: p("v_xor_b32 v19, 1, v19")
        p(f"v_lshl_add_u32 v{vW1[t]}, v19, 6, v9")
    p("v_mul_u32_u24 v7, 192, v7")
    p("v_add_u32 v7, v7, v8")
    p(f"v_add_u32 v{vW2}, {RR}, v7")
    p("v_lshlrev_b32 v7, 4, v2")
    p(f"v_lshl_add_u32 v{vSt}, v3, 10, v7")
    p(f"s_lshl_b32 s{S_T}, s{S_RB}, 1")
    p(f"s_add_u32 s{S_T}, s{S_T}, s{S_TG}")
    p(f"s_mul_i32 s{S_ST1}, s{S_T}, 229376")
    p(f"s_lshl_b32 s{S_T}, s{S_CB1}, 7")
    p(f"s_add_u32 s{S_ST1}, s{S_ST1}, s{S_T}")
    p(f"s_lshl_b32 s{S_T}, s{S_WN}, 13")
    p(f"s_add_u32 s{S_ST1}, s{S_ST1}, s{S_T}")
    p(f"s_add_u32 s{S_ST1}, s{S_ST1}, {WS_H}")
    p(f"s_add_u32 s{S_ST1B}, s{S_ST1}, 4096")
    p(f"s_lshl_b32 s{S_T}, s{S_RB}, 1")
    p(f"s_add_u32 s{S_T}, s{S_T}, s{S_WN}")
    p(f"s_mul_i32 s{S_ST2}, s{S_T}, 229376")
    p(f"s_lshl_b32 s{S_T}, s{S_CB2}, 7")
    p(f"s_add_u32 s{S_ST2}, s{S_ST2}, s{S_T}")
    p(f"s_lshl_b32 s{S_T}, s{S_TG}, 9")
    p(f"s_add_u32 s{S_ST2}, s{S_ST2}, s{S_T}")
    p(f"s_add_u32 s{S_ST2}, s{S_ST2}, {WS_H}")
    vm.wait('bias')
    bias_unpack(p, 2, 184, [[acc1(0,0), acc1(0,1)], [acc1(1,0), acc1(1,1)]])
    bias_unpack(p, 3, 200, [[acc2(0)], [acc2(1)], [acc2(2)]])
    X = XAddr(p, vXr)
    sc = " sc1" if cfg.fused else ""

    def reads(n, s):
        f = FR[s & 1]; i = n % 7; slot = n % 3
        if n < 7:
            o = X.off(i)
            for tt in range(2):
                p(f"ds_read_b128 {vr(f+4*tt,4)}, v{vXr[s]} offset:{o + tt*4096}")
            for t in range(2):
                for u in range(2):
                    p(f"ds_read_b64_tr_b16 {vr(f+8+4*t+2*u,2)}, v{vW1[t]} offset:{slot*16384 + (16*s+4*u)*256}")
            return 6
        else:
            o = X.off(i)
            p(f"ds_read_b128 {vr(f,4)}, v{vXr[s]} offset:{o}")
            for T in range(3):
                for u in range(2):
                    p(f"ds_read_b64_tr_b16 {vr(f+4+4*T+2*u,2)}, v{vW2} offset:{slot*16384 + (16*s+4*u)*192 + T*64}")
            return 7
    def mfmas(n, s):
        f = FR[s & 1]
        if n < 7:
            return [f"v_mfma_f32_32x32x16_bf16 {vr(acc1(t,tt),16)}, {vr(f+8+4*t,4)}, {vr(f+4*tt,4)}, {vr(acc1(t,tt),16)}"
                    for t in range(2) for tt in range(2)]
        return [f"v_mfma_f32_32x32x16_bf16 {vr(acc2(T),16)}, {vr(f+4+4*T,4)}, {vr(f,4)}, {vr(acc2(T),16)}" for T in range(3)]
    epi = []
    k = 0
    for t in range(2):
        for tt in range(2):
            for ph in range(2):
                so = S_ST1B if t else S_ST1
                st = f"buffer_store_dwordx4 {vr(PK[k&1],4)}, v{vSt}, {srd(SRD_WS)}, s{so} offen offset:{ph*2048 + tt*512}{sc}"
                epi += relu2_block(acc1(t,tt)+8*ph, TMP, PK[k&1], st); k += 1
    stamp(p, cfg, 0)
    p("s_barrier")
    stamp(p, cfg, 1)
    reads(0, 0)
    for n in range(14):
        for s in range(4):
            if s < 3:
                c = reads(n, s+1)
                p(f"s_waitcnt lgkmcnt({c})")
            else:
                p("s_waitcnt lgkmcnt(0)")
                if n == 12 and cfg.fused: p("s_waitcnt vmcnt(0)")
                p("s_barrier")
                if n == 12 and cfg.fused: publish(p, cfg, 'HF1')
                if n == 6: X.adjust(S_D)
                if n < 13: reads(n+1, 0)
            for m in mfmas(n, s):
                p(m)
                if n >= 7:
                    for _ in range(4):
                        if epi: p(epi.pop(0))
        if n == 6: stamp(p, cfg, 2)
    assert not epi
    k = 0
    for T in range(3):
        p(f"s_add_u32 s{S_T}, s{S_ST2}, {T*4096}")
        for ph in range(2):
            st = f"buffer_store_dwordx4 {vr(PK[k&1],4)}, v{vSt}, {srd(SRD_WS)}, s{S_T} offen offset:{ph*2048}{sc}"
            for x in relu2_block(acc2(T)+8*ph, TMP, PK[k&1], st): p(x)
            k += 1
    stamp(p, cfg, 3)

def publish(p, cfg, which):
    pass

def consumer_A(p, cfg):
    S_TG, S_HD, S_D, S_KV, S_PQ = 60, 61, 62, 63, 64
    vXr = [10, 11, 12, 13]; vWk, vWv = 14, 15; vWq = [16, 17]; vSt = 18; vL16 = 19; vG = 20
    FR = [24, 40]
    accK = lambda tt: 64 + tt*16
    accV = lambda tt: 96 + tt*16
    accQ = lambda t: 128 + t*16
    KV = 160; TMP = 56; PKK = 176; PKV = 192
    sc = " sc1" if cfg.fused else ""
    p(f"s_and_b32 s{S_TG}, s{S_W}, 1")
    p(f"s_lshr_b32 s{S_HD}, s{S_W}, 1")
    p(f"s_mov_b32 s70, {LOG2E}")
    p(f"s_mov_b32 s71, {EPS6}")
    p(f"s_lshl_b32 s{S_T}, s{S_TG}, 6")
    xswz(p, vXr, S_T)
    p(f"s_lshl_b32 s{S_D}, s{S_W}, 5")
    p(f"s_sub_u32 s{S_D}, s{S_D}, s{S_T}")
    p(f"s_lshl_b32 s{S_D}, s{S_D}, 7")
    p("v_lshlrev_b32 v8, 5, v4")
    p("v_lshl_add_u32 v8, v6, 3, v8")
    p(f"s_mul_i32 s{S_T}, s{S_HD}, 56")
    p(f"v_add_u32 v9, s{S_T}, v8")
    p("v_lshrrev_b32 v7, 6, v9")
    p("v_xor_b32 v7, v7, v5")
    p("v_and_b32 v9, 63, v9")
    p("v_lshl_add_u32 v9, v7, 6, v9")
    p("v_lshl_add_u32 v7, v3, 3, v5")
    p("v_lshl_add_u32 v9, v7, 8, v9")
    p(f"v_add_u32 v{vWk}, {RR}, v9")
    p(f"v_xor_b32 v{vWv}, 128, v{vWk}")
    p("v_lshl_add_u32 v9, v7, 7, v8")
    p("v_lshrrev_b32 v7, 1, v5")
    p("v_lshl_add_u32 v9, v7, 6, v9")
    p(f"v_add_u32 v{vWq[0]}, {RR}, v9")
    p(f"v_xor_b32 v{vWq[1]}, 64, v{vWq[0]}")
    p(f"v_lshlrev_b32 v{vG}, 4, v3")
    p(f"v_add_u32 v{vG}, {RR}, v{vG}")
    p(f"v_lshlrev_b32 v{vL16}, 4, v1")
    p("v_lshlrev_b32 v7, 4, v2")
    p(f"v_lshl_add_u32 v{vSt}, v3, 11, v7")
    p(f"s_lshl_b32 s{S_KV}, s{S_CG}, 4")
    p(f"s_add_u32 s{S_KV}, s{S_KV}, s{S_RB}")
    p(f"s_lshl_b32 s{S_KV}, s{S_KV}, 1")
    p(f"s_add_u32 s{S_KV}, s{S_KV}, s{S_HD}")
    p(f"s_lshl_b32 s{S_KV}, s{S_KV}, 12")
    p(f"s_add_u32 s{S_KV}, s{S_KV}, {WS_KVP}")
    p(f"s_mul_i32 s{S_PQ}, s{S_RB}, 114688")
    p(f"s_lshl_b32 s{S_T}, s{S_CG}, 14")
    p(f"s_add_u32 s{S_PQ}, s{S_PQ}, s{S_T}")
    p(f"s_lshl_b32 s{S_T}, s{S_W}, 9")
    p(f"s_add_u32 s{S_PQ}, s{S_PQ}, s{S_T}")
    p(f"s_add_u32 s{S_PQ}, s{S_PQ}, {WS_PQ}")
    for r in range(64, 160): p(f"v_mov_b32 v{r}, 0")
    X = XAddr(p, vXr)
    def reads(n, s, gate=False):
        f = FR[s & 1]; i = n % 7; slot = n % 3
        o = X.off(i)
        if n < 7:
            for tt in range(2):
                p(f"ds_read_b128 {vr(f+4*tt,4)}, v{vXr[s]} offset:{o + tt*4096}")
            for t, a in enumerate((vWk, vWv)):
                for u in range(2):
                    p(f"ds_read_b64_tr_b16 {vr(f+8+4*t+2*u,2)}, v{a} offset:{slot*16384 + (16*s+4*u)*256}")
            return 6
        p(f"ds_read_b128 {vr(f,4)}, v{vXr[s]} offset:{o}")
        if gate:
            p(f"ds_read_b128 {vr(f+4,4)}, v{vG} offset:{slot*16384 + s*32}")
            return 2
        for t in range(2):
            for u in range(2):
                p(f"ds_read_b64_tr_b16 {vr(f+4+4*t+2*u,2)}, v{vWq[t]} offset:{slot*16384 + (16*s+4*u)*128}")
        return 5
    def mfmas(n, s, gate=False):
        f = FR[s & 1]
        if n < 7:
            o = []
            for tt in range(2):
                o.append(f"v_mfma_f32_32x32x16_bf16 {vr(accK(tt),16)}, {vr(f+4*tt,4)}, {vr(f+8,4)}, {vr(accK(tt),16)}")
                o.append(f"v_mfma_f32_32x32x16_bf16 {vr(accV(tt),16)}, {vr(f+4*tt,4)}, {vr(f+12,4)}, {vr(accV(tt),16)}")
            return o
        if gate:
            return [f"v_mfma_f32_32x32x16_bf16 {vr(accQ(0),16)}, {vr(f+4,4)}, {vr(f,4)}, {vr(accQ(0),16)}"]
        return [f"v_mfma_f32_32x32x16_bf16 {vr(accQ(t),16)}, {vr(f+4+4*t,4)}, {vr(f,4)}, {vr(accQ(t),16)}" for t in range(2)]
    stamp(p, cfg, 0)
    p("s_barrier")
    stamp(p, cfg, 1)
    reads(0, 0)
    for n in range(7):
        for s in range(4):
            if s < 3:
                c = reads(n, s+1); p(f"s_waitcnt lgkmcnt({c})")
            else:
                p("s_waitcnt lgkmcnt(0)")
                p("s_barrier")
                if n < 6: reads(n+1, 0)
            for m in mfmas(n, s): p(m)
    stamp(p, cfg, 2)
    for tt in range(2):
        for x in phi_block(accK(tt), 16, TMP): p(x)
        for r in range(8): p(f"v_cvt_pk_bf16_f32 v{PKK+8*tt+r}, v{accK(tt)+2*r}, v{accK(tt)+2*r+1}")
    p("v_cmp_eq_u32 vcc, 28, v2")
    p("v_mov_b32 v7, 0x3f803f80")
    for tt in range(2):
        for r in range(8): p(f"v_cvt_pk_bf16_f32 v{PKV+8*tt+r}, v{accV(tt)+2*r}, v{accV(tt)+2*r+1}")
        for r in range(8): p(f"v_cndmask_b32 v{PKV+8*tt+r}, v{PKV+8*tt+r}, v7, vcc")
    first = True
    for tt in range(2):
        for ks in range(2):
            c = "0" if first else vr(KV,16)
            p(f"v_mfma_f32_32x32x16_bf16 {vr(KV,16)}, {vr(PKK+8*tt+4*ks,4)}, {vr(PKV+8*tt+4*ks,4)}, {c}")
            first = False
    p(f"s_lshl_b32 s{S_T}, s{S_HD}, 12")
    p(f"s_add_u32 s{S_T}, s{S_T}, {RR+8192}")
    p(f"v_add_u32 v7, s{S_T}, v{vL16}")
    l1 = p.newlabel('La'); l2 = p.newlabel('La')
    p(f"s_cmp_eq_u32 s{S_TG}, 0")
    p(f"s_cbranch_scc1 {l1}")
    p("s_nop 7"); p("s_nop 3")
    for q in range(4): p(f"ds_write_b128 v7, {vr(KV+4*q,4)} offset:{q*1024}")
    p("s_waitcnt lgkmcnt(0)")
    p.label(l1)
    p("s_barrier")
    p(f"s_cmp_eq_u32 s{S_TG}, 0")
    p(f"s_cbranch_scc0 {l2}")
    for q in range(4): p(f"ds_read_b128 {vr(PKK+4*q,4)}, v7 offset:{q*1024}")
    p("s_waitcnt lgkmcnt(0)")
    p("s_nop 7")
    for r in range(16): p(f"v_add_f32 v{KV+r}, v{KV+r}, v{PKK+r}")
    for q in range(4):
        p(f"buffer_store_dwordx4 {vr(KV+4*q,4)}, v{vL16}, {srd(SRD_WS)}, s{S_KV} offen offset:{q*1024}{sc}")
    p.label(l2)
    X.adjust(S_D)
    lg = p.newlabel('Lgate'); le = p.newlabel('Lqend')
    p(f"s_cmp_eq_u32 s{S_CG}, 7")
    p(f"s_cbranch_scc1 {lg}")
    shift0 = X.shift
    for gate in (False, True):
        if gate:
            p.label(lg); X.shift = shift0
        reads(7, 0, gate)
        for n in range(7, 14):
            for s in range(4):
                if s < 3:
                    c = reads(n, s+1, gate); p(f"s_waitcnt lgkmcnt({c})")
                else:
                    p("s_waitcnt lgkmcnt(0)")
                    if n == 11 and cfg.fused: p("s_waitcnt vmcnt(0)")
                    p("s_barrier")
                    if n == 11 and cfg.fused: publish(p, cfg, 'KVF')
                    if n < 13: reads(n+1, 0, gate)
                for m in mfmas(n, s, gate): p(m)
        if not gate:
            k = 0
            for t in range(2):
                for x in phi_block(accQ(t), 16, TMP): p(x)
                p(f"s_add_u32 s{S_T}, s{S_PQ}, {t*8192}")
                for ph in range(2):
                    pk = PKK + 4*(k&1); k += 1
                    for r in range(4): p(f"v_cvt_pk_bf16_f32 v{pk+r}, v{accQ(t)+8*ph+2*r}, v{accQ(t)+8*ph+2*r+1}")
                    if ph: p(f"s_add_u32 s{S_T}, s{S_T}, 4096")
                    p(f"buffer_store_dwordx4 {vr(pk,4)}, v{vSt}, {srd(SRD_WS)}, s{S_T} offen{sc}")
            p(f"s_branch {le}")
        else:
            p("s_nop 7"); p("s_nop 3")
            p(f"v_mul_f32 v7, s70, v{accQ(0)}")
            p("v_exp_f32_e64 v7, -v7")
            p("v_add_f32 v7, 1.0, v7")
            p("v_rcp_f32 v7, v7")
            p("v_lshlrev_b32 v8, 2, v2")
            p("v_lshl_add_u32 v8, v3, 30, v8")
            p(f"s_lshl_b32 s{S_T}, s{S_RB}, 2")
            p(f"s_add_u32 s{S_T}, s{S_T}, s{S_W}")
            p(f"s_lshl_b32 s{S_T}, s{S_T}, 7")
            p(f"s_add_u32 s{S_T}, s{S_T}, {WS_G}")
            p(f"buffer_store_dword v7, v8, {srd(SRD_WS)}, s{S_T} offen{sc}")
    p.label(le)
    stamp(p, cfg, 3)


S_OH, S_ORQ = 72, 73
def poll(p, cfg, voff, soff, tmp, target=1):
    lp = p.newlabel('Lpoll'); dn = p.newlabel('Lpdone')
    p("s_mov_b32 s95, 0x40000")
    p.label(lp)
    p(f"buffer_load_dword v{tmp}, v{voff}, {srd(SRD_WS)}, s{soff} offen sc1")
    p("s_waitcnt vmcnt(0)")
    p(f"v_cmp_ne_u32 vcc, {target}, v{tmp}")
    p(f"s_cbranch_vccz {dn}")
    p("s_sleep 1")
    p("s_sub_u32 s95, s95, 1")
    p("s_cmp_lg_u32 s95, 0")
    p(f"s_cbranch_scc1 {lp}")
    p.label(dn)

def task_O(p, cfg):
    S_HD, S_Q, S_A, S_B, S_OST = 60, 61, 62, 63, 64
    sc = " sc1" if cfg.fused else ""
    vL16, vSt, vG4 = 10, 11, 12
    vP = [14, 15, 16, 17]
    ACC = 64
    LD = 80
    AF = 24
    BF = 32
    D = [144, 160]
    GV = 48
    PK = [176, 184]
    p(f"s_and_b32 s{S_HD}, s{S_WAVE}, 1")
    p(f"s_lshr_b32 s{S_Q}, s{S_WAVE}, 1")
    p(f"s_mov_b32 s71, {EPS6}")
    p(f"v_lshlrev_b32 v{vL16}, 4, v1")
    if cfg.fused:
        p("v_min_u32 v7, 15, v1"); p("v_lshlrev_b32 v7, 2, v7")
        p(f"s_lshl_b32 s{S_A}, s{S_OH}, 7"); p(f"s_add_u32 s{S_A}, s{S_A}, {KVF}")
        poll(p, cfg, 7, S_A, 8)
    p(f"s_lshl_b32 s{S_A}, s{S_OH}, 4")
    p(f"s_lshl_b32 s{S_T}, s{S_Q}, 2")
    p(f"s_add_u32 s{S_A}, s{S_A}, s{S_T}")
    p(f"s_lshl_b32 s{S_A}, s{S_A}, 1")
    p(f"s_add_u32 s{S_A}, s{S_A}, s{S_HD}")
    p(f"s_lshl_b32 s{S_A}, s{S_A}, 12")
    p(f"s_add_u32 s{S_A}, s{S_A}, {WS_KVP}")
    vm = VM(p)
    for k in range(4):
        for q in range(4):
            p(f"buffer_load_dwordx4 {vr(LD+16*k+4*q,4)}, v{vL16}, {srd(SRD_WS)}, s{S_A} offen offset:{q*1024}{sc}"); vm.issue('kv')
        if k < 3: p(f"s_add_u32 s{S_A}, s{S_A}, 8192")
    if cfg.fused:
        p("v_bfe_u32 v7, v1, 3, 2"); p("v_lshlrev_b32 v7, 7, v7")
        p("v_and_b32 v8, 7, v1"); p("v_lshl_add_u32 v7, v8, 2, v7")
        p(f"s_lshl_b32 s{S_B}, s{S_ORQ}, 9"); p(f"s_add_u32 s{S_B}, s{S_B}, {PQF}")
        poll(p, cfg, 7, S_B, 8); vm.q = []
    p(f"s_mul_i32 s{S_B}, s{S_OH}, 7")
    p(f"s_lshr_b32 s{S_B}, s{S_B}, 1")
    p(f"s_lshl_b32 s{S_B}, s{S_B}, 12")
    p(f"s_mul_i32 s{S_T}, s{S_ORQ}, {4*114688}")
    p(f"s_add_u32 s{S_B}, s{S_B}, s{S_T}")
    p(f"s_lshl_b32 s65, s{S_WAVE}, 10")
    p(f"s_add_u32 s{S_B}, s{S_B}, s65")
    p(f"s_add_u32 s{S_B}, s{S_B}, {WS_PQ}")
    for i in range(8):
        p(f"s_add_u32 m0, s65, {i*8192}")
        p(f"s_add_u32 s66, s{S_B}, {(i>>1)*114688 + (i&1)*8192}")
        p(f"buffer_load_dwordx4 v{vL16}, {srd(SRD_WS)}, s66 offen{sc} lds"); vm.issue('pq')
    p(f"v_lshlrev_b32 v{vG4}, 2, v2")
    p(f"s_lshl_b32 s66, s{S_ORQ}, 4")
    p(f"s_add_u32 s66, s66, s{S_Q}")
    p(f"s_lshl_b32 s66, s66, 7")
    p(f"s_add_u32 s66, s66, {WS_G}")
    for k in range(4):
        p(f"buffer_load_dword v{GV+k}, v{vG4}, {srd(SRD_WS)}, s66 offen offset:{k*512}{sc}"); vm.issue('g')
    p(f"s_and_b32 s{S_T}, s{S_OH}, 1")
    p(f"s_lshl_b32 s{S_T}, s{S_T}, 1")
    p(f"s_mul_i32 s66, s{S_HD}, 7")
    p(f"s_add_u32 s{S_T}, s{S_T}, s66")
    p(f"s_lshl_b32 s66, s{S_Q}, 9")
    p("v_lshlrev_b32 v9, 4, v2")
    p("v_add_u32 v9, s66, v9")
    for j in range(4):
        p(f"v_add_u32 v7, {2*j}, v3")
        if j == 3: p("v_lshlrev_b32 v8, 1, v3"); p("v_sub_u32 v7, v7, v8")
        p(f"v_add_u32 v7, s{S_T}, v7")
        p("v_lshrrev_b32 v8, 2, v7")
        p("v_lshlrev_b32 v8, 1, v8")
        p("v_and_b32 v13, 1, v7")
        p("v_add_u32 v8, v8, v13")
        p("v_bfe_u32 v13, v7, 1, 1")
        p("v_lshlrev_b32 v13, 3, v13")
        p("v_lshl_add_u32 v8, v8, 11, v13")
        p(f"v_add_u32 v{vP[j]}, v8, v9")
    p("v_lshlrev_b32 v7, 4, v2")
    p(f"v_lshl_add_u32 v{vSt}, v3, 10, v7")
    p(f"s_lshl_b32 s{S_OST}, s{S_ORQ}, 3")
    p(f"s_lshr_b32 s{S_T}, s{S_Q}, 1")
    p(f"s_add_u32 s{S_OST}, s{S_OST}, s{S_T}")
    p(f"s_lshl_b32 s{S_OST}, s{S_OST}, 16")
    p(f"s_lshl_b32 s{S_T}, s{S_OH}, 1")
    p(f"s_add_u32 s{S_T}, s{S_T}, s{S_HD}")
    p(f"s_lshl_b32 s{S_T}, s{S_T}, 12")
    p(f"s_add_u32 s{S_OST}, s{S_OST}, s{S_T}")
    p(f"s_and_b32 s{S_T}, s{S_Q}, 1")
    p(f"s_lshl_b32 s{S_T}, s{S_T}, 9")
    p(f"s_add_u32 s{S_OST}, s{S_OST}, s{S_T}")
    p(f"s_add_u32 s{S_OST}, s{S_OST}, {WS_O}")
    vm.wait('kv')
    for r in range(16):
        p(f"v_add_f32 v{LD+r}, v{LD+r}, v{LD+16+r}")
        p(f"v_add_f32 v{LD+32+r}, v{LD+32+r}, v{LD+48+r}")
    for r in range(16): p(f"v_add_f32 v{ACC+r}, v{LD+r}, v{LD+32+r}")
    p(f"s_lshl_b32 s66, s{S_WAVE}, 12")
    p(f"s_add_u32 s66, s66, 65536")
    p(f"v_add_u32 v7, s66, v{vL16}")
    for q in range(4): p(f"ds_write_b128 v7, {vr(ACC+4*q,4)} offset:{q*1024}")
    p("s_waitcnt lgkmcnt(0)")
    vm.drain()
    p("s_barrier")
    p(f"s_lshl_b32 s66, s{S_HD}, 12")
    p(f"s_add_u32 s66, s66, 65536")
    p(f"v_add_u32 v7, s66, v{vL16}")
    for k in range(4):
        for q in range(4): p(f"ds_read_b128 {vr(LD+16*k+4*q,4)}, v7 offset:{k*8192+q*1024}")
    p("s_waitcnt lgkmcnt(0)")
    for r in range(16):
        p(f"v_add_f32 v{LD+r}, v{LD+r}, v{LD+16+r}")
        p(f"v_add_f32 v{LD+32+r}, v{LD+32+r}, v{LD+48+r}")
    for r in range(16): p(f"v_add_f32 v{ACC+r}, v{LD+r}, v{LD+32+r}")
    p("v_cmp_eq_u32 vcc, 0, v3")
    for r in range(12, 16): p(f"v_cndmask_b32 v{ACC+r}, 0, v{ACC+r}, vcc")
    for r in range(8): p(f"v_cvt_pk_bf16_f32 v{AF+r}, v{ACC+2*r}, v{ACC+2*r+1}")
    def rd(k):
        b = BF + 8*(k & 1)
        for j in range(4): p(f"ds_read_b64 {vr(b+2*j,2)}, v{vP[j]} offset:{k*16384}")
    rd(0)
    for k in range(4):
        b = BF + 8*(k & 1); d = D[k & 1]
        if k < 3:
            rd(k+1); p("s_waitcnt lgkmcnt(4)")
        else: p("s_waitcnt lgkmcnt(0)")
        p(f"v_mfma_f32_32x32x16_bf16 {vr(d,16)}, {vr(AF,4)}, {vr(b,4)}, 0")
        p(f"v_mfma_f32_32x32x16_bf16 {vr(d,16)}, {vr(AF+4,4)}, {vr(b+4,4)}, {vr(d,16)}")
        p(f"v_mov_b32 v7, v{d+12}")
        p(f"v_mov_b32 v8, v{d+12}")
        p("v_permlane32_swap_b32 v7, v8")
        p("v_add_f32 v8, s71, v8")
        p("v_rcp_f32 v8, v8")
        p(f"v_mul_f32 v8, v8, v{GV+k}")
        for r in range(16): p(f"v_mul_f32 v{d+r}, v{d+r}, v8")
        for r in range(12, 16): p(f"v_cndmask_b32 v{d+r}, 0, v{d+r}, vcc")
        for ph in range(2):
            pk = PK[ph]
            for r in range(4): p(f"v_cvt_pk_bf16_f32 v{pk+r}, v{d+8*ph+2*r}, v{d+8*ph+2*r+1}")
            p(f"buffer_store_dwordx4 {vr(pk,4)}, v{vSt}, {srd(SRD_WS)}, s{S_OST} offen offset:{ph*2048}{sc}")
        if k < 3: p(f"s_add_u32 s{S_OST}, s{S_OST}, {2*65536}")

S_GR, S_GC = 72, 73
NS, DA = 10, 6
def g_slot_base(m): return (m % NS) * 16384
def loader_G(p, cfg):
    vA, vB = 10, 11
    S_HA, S_OA, S_WB, S_R1, S_R2, S_R3, S_K, S_U, S_WK2, S_SO2 = 60, 61, 62, 63, 64, 65, 66, 67, 68, 69
    sc = " sc1" if cfg.fused else ""
    mk_srd(p, SRD_A1, P_W2, 1792*896); mk_srd(p, SRD_A2, P_WO, 448*896)
    p(f"v_lshlrev_b32 v{vA}, 4, v1")
    p("v_lshrrev_b32 v7, 3, v1"); p("v_mul_u32_u24 v7, 896, v7")
    p("v_bfe_u32 v8, v1, 4, 1"); p("v_lshlrev_b32 v8, 2, v8")
    p("v_and_b32 v9, 7, v1"); p("v_xor_b32 v8, v8, v9")
    p(f"v_lshl_add_u32 v{vB}, v8, 4, v7")
    p(f"s_lshl_b32 s{S_WK2}, s{S_W}, 11")
    p(f"s_mul_i32 s{S_HA}, s{S_GR}, 229376"); p(f"s_add_u32 s{S_HA}, s{S_HA}, {WS_H}"); p(f"s_add_u32 s{S_HA}, s{S_HA}, s{S_WK2}")
    p(f"s_lshl_b32 s{S_OA}, s{S_GR}, 16"); p(f"s_add_u32 s{S_OA}, s{S_OA}, {WS_O}"); p(f"s_add_u32 s{S_OA}, s{S_OA}, s{S_WK2}")
    p(f"s_lshl_b32 s{S_WB}, s{S_GC}, 7"); p(f"s_mul_i32 s{S_T}, s{S_W}, {16*896}"); p(f"s_add_u32 s{S_WB}, s{S_WB}, s{S_T}")
    p(f"s_mul_i32 s{S_R1}, s{S_GR}, 3"); p(f"s_lshl_b32 s{S_T}, s{S_GC}, 1"); p(f"s_add_u32 s{S_R1}, s{S_R1}, s{S_T}")
    p(f"s_mul_i32 s{S_T}, s{S_R1}, 171"); p(f"s_lshr_b32 s{S_T}, s{S_T}, 11"); p(f"s_mul_i32 s{S_T}, s{S_T}, 12")
    p(f"s_sub_u32 s{S_R2}, s{S_R1}, s{S_T}")
    p(f"s_and_b32 s{S_R3}, s{S_R1}, 7"); p(f"s_and_b32 s{S_R1}, s{S_R1}, 15")
    def kappa(m):
        if m < 16:
            p(f"s_add_u32 s{S_U}, s{S_R1}, {m}"); p(f"s_and_b32 s{S_U}, s{S_U}, 15")
            p(f"s_lshr_b32 s{S_K}, s{S_U}, 2"); p(f"s_mul_i32 s{S_K}, s{S_K}, 7")
            p(f"s_and_b32 s{S_U}, s{S_U}, 3"); p(f"s_add_u32 s{S_K}, s{S_K}, s{S_U}")
            p(f"s_cmp_ge_u32 s{S_U}, 2"); p(f"s_cselect_b32 s{S_U}, 3, 0"); p(f"s_add_u32 s{S_K}, s{S_K}, s{S_U}")
        elif m < 28:
            p(f"s_add_u32 s{S_U}, s{S_R2}, {m-16}"); p(f"s_cmp_ge_u32 s{S_U}, 12"); p(f"s_cselect_b32 s{S_K}, 12, 0")
            p(f"s_sub_u32 s{S_U}, s{S_U}, s{S_K}")
            p(f"s_mul_i32 s{S_K}, s{S_U}, 43"); p(f"s_lshr_b32 s{S_K}, s{S_K}, 7")
            p(f"s_lshl_b32 s{S_T}, s{S_K}, 2"); p(f"s_add_u32 s{S_K}, s{S_T}, s{S_U}")
            p(f"s_add_u32 s{S_K}, s{S_K}, 2")
        else:
            p(f"s_add_u32 s{S_K}, s{S_R3}, {m-28}"); p(f"s_and_b32 s{S_K}, s{S_K}, 7")
    vm = VM(p)
    def issueB(m):
        kappa(m)
        if m < 28: p(f"s_mul_i32 s{S_SO2}, s{S_K}, {64*896}"); sr = SRD_A1
        else: p(f"s_mul_i32 s{S_SO2}, s{S_K}, {56*896}"); sr = SRD_A2
        p(f"s_add_u32 s{S_SO2}, s{S_SO2}, s{S_WB}")
        for v in range(2):
            p(f"s_add_u32 m0, s{S_WK2}, {g_slot_base(m) + 8192 + v*1024}")
            if v: p(f"s_add_u32 s{S_SO2}, s{S_SO2}, {8*896}")
            p(f"buffer_load_dwordx4 v{vB}, {srd(sr)}, s{S_SO2} offen lds"); vm.issue(('B', m))
    def issueA(m):
        kappa(m)
        p(f"s_lshl_b32 s{S_SO2}, s{S_K}, 13")
        p(f"s_add_u32 s{S_SO2}, s{S_SO2}, s{S_HA if m < 28 else S_OA}")
        for v in range(2):
            p(f"s_add_u32 m0, s{S_WK2}, {g_slot_base(m) + v*1024}")
            if v: p(f"s_add_u32 s{S_SO2}, s{S_SO2}, 1024")
            p(f"buffer_load_dwordx4 v{vA}, {srd(SRD_WS)}, s{S_SO2} offen{sc} lds"); vm.issue(('A', m))
    NST = 36
    for m in range(DA):
        issueB(m); issueA(m)
    for m in range(DA, NS): issueB(m)
    vm.wait(('A', 0)); p("s_barrier")
    for n in range(NST):
        if n + 1 < NST:
            vm.wait(('A', n+1))
        p("s_barrier")
        if n + NS < NST: issueB(n + NS)
        if n + DA < NST: issueA(n + DA)
    p("s_barrier")
for u in range(12): assert (u*43)>>7 == u//3
for x in range(120): assert (x*171)>>11 == x//12

def consumer_G(p, cfg):
    S_KH, S_WN, S_A = 60, 61, 62
    vH = [10, 11, 12]; vWb = [13, 14, 15]; vB = 16; vG4 = 17; vL16 = 18
    FR = [24, 48]
    ACC = [72, 88]
    GV = 104; TMP = 108; PK = 128
    sc = " sc1" if cfg.fused else ""
    mk_srd(p, SRD_A1, P_B2, 896); mk_srd(p, SRD_O, P_OUT, 2048*896)
    p(f"s_lshr_b32 s{S_KH}, s{S_W}, 1"); p(f"s_and_b32 s{S_WN}, s{S_W}, 1")
    vm = VM(p)
    p(f"v_lshlrev_b32 v{vB}, 3, v3")
    p(f"s_lshl_b32 s{S_A}, s{S_GC}, 7"); p(f"s_lshl_b32 s{S_T}, s{S_WN}, 6"); p(f"s_add_u32 s{S_A}, s{S_A}, s{S_T}")
    bias_init(p, vm, SRD_A1, vB, S_A, 1, TMP, None)
    p(f"s_lshl_b32 s{S_T}, s{S_KH}, 12")
    p("v_lshlrev_b32 v7, 4, v2"); p("v_lshl_add_u32 v7, v3, 10, v7")
    p(f"v_add_u32 v{vH[0]}, s{S_T}, v7")
    p("v_lshl_add_u32 v7, v3, 2, v5")
    p(f"s_lshl_b32 s{S_T}, s{S_KH}, 5"); p(f"v_add_u32 v7, s{S_T}, v7")
    p("v_lshlrev_b32 v7, 7, v7")
    p("v_lshrrev_b32 v8, 1, v5"); p(f"v_xor_b32 v8, s{S_WN}, v8")
    p("v_lshl_add_u32 v7, v8, 6, v7")
    p("v_lshl_add_u32 v7, v4, 5, v7"); p("v_lshl_add_u32 v7, v6, 3, v7")
    p(f"v_add_u32 v{vWb[0]}, 8192, v7")
    for k in (1, 2):
        p(f"v_add_u32 v{vH[k]}, {65536*k}, v{vH[0]}"); p(f"v_add_u32 v{vWb[k]}, {65536*k}, v{vWb[0]}")
    p(f"v_lshlrev_b32 v{vG4}, 2, v2"); p(f"v_lshlrev_b32 v{vL16}, 4, v1")
    vm.wait('bias')
    bias_unpack(p, 1, TMP, [[ACC[0], ACC[1]]])
    lz = p.newlabel('Lz')
    p(f"s_cmp_eq_u32 s{S_KH}, 0"); p(f"s_cbranch_scc1 {lz}")
    for r in range(32): p(f"v_mov_b32 v{ACC[0]+r}, 0")
    p.label(lz)
    def reads(m):
        f = FR[m & 1]; base = g_slot_base(m); k = base // 65536; o = base - 65536*k
        for s in range(2):
            for u in range(2):
                p(f"ds_read_b64_tr_b16 {vr(f+12*s+2*u,2)}, v{vWb[k]} offset:{o + s*2048 + u*1024}")
            for tt in range(2):
                p(f"ds_read_b128 {vr(f+12*s+4+4*tt,4)}, v{vH[k]} offset:{o + s*2048 + tt*512}")
    def mfmas(m):
        f = FR[m & 1]
        for s in range(2):
            for tt in range(2):
                p(f"v_mfma_f32_32x32x16_bf16 {vr(ACC[tt],16)}, {vr(f+12*s,4)}, {vr(f+12*s+4+4*tt,4)}, {vr(ACC[tt],16)}")
    p("s_barrier")
    reads(0)
    NST = 36
    for m in range(NST):
        p("s_waitcnt lgkmcnt(0)")
        p("s_barrier")
        if m == 22:
            p(f"s_lshl_b32 s{S_A}, s{S_GR}, 8"); p(f"s_add_u32 s{S_A}, s{S_A}, {WS_G}")
            for tt in range(2):
                p(f"buffer_load_dword v{GV+tt}, v{vG4}, {srd(SRD_WS)}, s{S_A} offen offset:{tt*128}{sc}")
        if m == 27:
            p(f"s_lshl_b32 s{S_T}, s{S_KH}, 9")
            for k in range(3): p(f"v_subrev_u32 v{vWb[k]}, s{S_T}, v{vWb[k]}")
        if m + 1 < NST: reads(m+1)
        mfmas(m)
        if m == 27:
            p("s_waitcnt vmcnt(0)")
            for tt in range(2): p(f"v_sub_f32 v{GV+tt}, 1.0, v{GV+tt}")
            for tt in range(2):
                for r in range(16): p(f"v_mul_f32 v{ACC[tt]+r}, v{ACC[tt]+r}, v{GV+tt}")
    p(f"s_lshl_b32 s{S_T}, s{S_W}, 12")
    p(f"v_add_u32 v7, s{S_T}, v{vL16}")
    p(f"s_xor_b32 s{S_T}, s{S_W}, 2"); p(f"s_lshl_b32 s{S_T}, s{S_T}, 12")
    p(f"v_add_u32 v8, s{S_T}, v{vL16}")
    l1 = p.newlabel('Lr'); l2 = p.newlabel('Lr')
    p(f"s_cmp_eq_u32 s{S_KH}, 0"); p(f"s_cbranch_scc1 {l1}")
    p("s_nop 7"); p("s_nop 3")
    for q in range(4): p(f"ds_write_b128 v7, {vr(ACC[0]+4*q,4)} offset:{q*1024}")
    p("s_nop 1")
    for r in range(16): p(f"v_mov_b32 v{ACC[0]+r}, v{ACC[1]+r}")
    p(f"s_branch {l2}")
    p.label(l1)
    p("s_nop 7"); p("s_nop 3")
    for q in range(4): p(f"ds_write_b128 v7, {vr(ACC[1]+4*q,4)} offset:{q*1024}")
    p.label(l2)
    p("s_waitcnt lgkmcnt(0)")
    p("s_barrier")
    for q in range(4): p(f"ds_read_b128 {vr(ACC[1]+4*q,4)}, v8 offset:{q*1024}")
    p("s_waitcnt lgkmcnt(0)")
    for r in range(16): p(f"v_add_f32 v{ACC[0]+r}, v{ACC[0]+r}, v{ACC[1]+r}")
    for r in range(8): p(f"v_cvt_pk_bf16_f32 v{PK+r}, v{ACC[0]+2*r}, v{ACC[0]+2*r+1}")
    p("s_nop 1")
    for a, b in ((0, 2), (1, 3), (4, 6), (5, 7)): p(f"v_permlane32_swap_b32 v{PK+a}, v{PK+b}")
    p("v_mul_u32_u24 v7, 896, v2"); p("v_lshl_add_u32 v7, v3, 4, v7")
    p(f"s_lshl_b32 s{S_A}, s{S_GR}, 1"); p(f"s_add_u32 s{S_A}, s{S_A}, s{S_KH}"); p(f"s_mul_i32 s{S_A}, s{S_A}, {32*896}")
    p(f"s_lshl_b32 s{S_T}, s{S_GC}, 7"); p(f"s_add_u32 s{S_A}, s{S_A}, s{S_T}")
    p(f"s_lshl_b32 s{S_T}, s{S_WN}, 6"); p(f"s_add_u32 s{S_A}, s{S_A}, s{S_T}")
    for j in range(2):
        p(f"buffer_store_dwordx4 {vr(PK+4*j,4)}, v7, {srd(SRD_O)}, s{S_A} offen offset:{j*32}")

def gen_O_kernel(cfg, sfx):
    p = Prog()
    prologue(p, cfg, 32)
    p(f"s_and_b32 s{S_OH}, s2, 7"); p(f"s_lshr_b32 s{S_ORQ}, s2, 3")
    task_O(p, cfg)
    p.label("L_end"); p("s_endpgm")
    p.fix_hazards()
    return p.text().replace("L_end", f"L_end{sfx}").replace("Lp", f"Lp{sfx}_")

def gen_G_kernel(cfg, sfx):
    p = Prog(); p.uid = 1000
    prologue(p, cfg, 224)
    p(f"s_mul_i32 s{S_T}, s2, 293"); p(f"s_lshr_b32 s{S_GR}, s{S_T}, 11")
    p(f"s_mul_i32 s{S_T}, s{S_GR}, 7"); p(f"s_sub_u32 s{S_GC}, s2, s{S_T}")
    LC = p.newlabel('Lcons')
    p(f"s_cmp_lt_u32 s{S_WAVE}, 4"); p(f"s_cbranch_scc1 {LC}")
    loader_G(p, cfg); p("s_branch L_end")
    p.label(LC); consumer_G(p, cfg)
    p.label("L_end"); p("s_endpgm")
    p.fix_hazards()
    return p.text().replace("L_end", f"L_end{sfx}")
for x in range(224): assert (x*293)>>11 == x//7

def kernel_text(body, name, first):
    return f""".text
.globl {name}
.p2align 8
.type {name},@function
{name}:
{body}
.section .rodata,"a"
.p2align 6
.amdhsa_kernel {name}
  .amdhsa_next_free_vgpr 256
  .amdhsa_next_free_sgpr 102
  .amdhsa_accum_offset 256
  .amdhsa_group_segment_fixed_size 0
  .amdhsa_kernarg_size 96
  .amdhsa_user_sgpr_count 2
  .amdhsa_user_sgpr_kernarg_segment_ptr 1
  .amdhsa_system_sgpr_workgroup_id_x 1
  .amdhsa_float_denorm_mode_32 3
.end_amdhsa_kernel
"""

def gen_stage1_kernel(cfg, sfx):
    p = Prog()
    prologue(p, cfg, 256)
    LA, LC, LCA = p.newlabel('LloadA'), p.newlabel('Lcons'), p.newlabel('LconsA')
    p(f"s_cmp_lt_u32 s{S_WAVE}, 4")
    p(f"s_cbranch_scc1 {LC}")
    p(f"s_cmp_lt_u32 s{S_XCD}, 4")
    p(f"s_cbranch_scc1 {LA}")
    loader1(p, cfg, 'F'); p("s_branch L_end")
    p.label(LA); loader1(p, cfg, 'A'); p("s_branch L_end")
    p.label(LC)
    p(f"s_cmp_lt_u32 s{S_XCD}, 4")
    p(f"s_cbranch_scc1 {LCA}")
    consumer_F(p, cfg); p("s_branch L_end")
    p.label(LCA); consumer_A(p, cfg)
    p.label("L_end"); p("s_endpgm")
    n = p.fix_hazards()
    txt = p.text().replace("L_end", f"L_end{sfx}")
    return txt

if __name__ == '__main__':
    cfg = Cfg()
    cfg.stamps = 'stamps' in sys.argv
    b1 = gen_stage1_kernel(cfg, '1'); b2 = gen_O_kernel(cfg, '2'); b3 = gen_G_kernel(cfg, '3')
    hdr = (f"; @launch kernel=k1_kernel grid=(256,1,1) block=(512,1,1) lds={LDS_BYTES}\n"
           f"; @launch kernel=k2_kernel grid=(32,1,1) block=(512,1,1) lds={LDS_BYTES}\n"
           f"; @launch kernel=k3_kernel grid=(224,1,1) block=(512,1,1) lds={LDS_BYTES}\n"
           ".amdgcn_target \"amdgcn-amd-amdhsa--gfx950\"\n")
    open('multi.s', 'w').write(hdr + kernel_text(b1, 'k1_kernel', True) + kernel_text(b2, 'k2_kernel', False) + kernel_text(b3, 'k3_kernel', False))
    print("ok", len(b1.splitlines()), len(b2.splitlines()), len(b3.splitlines()))
```
